```python
import torch

def _softmax(x, axis=-1):
    return torch.softmax(x, dim=axis)
def _gelu(x):
    return torch.nn.functional.gelu(x, approximate="tanh")
def _silu(x):
    return torch.nn.functional.silu(x)
def _sigmoid(x):
    return torch.sigmoid(x)
def _layernorm(x, axis=-1, eps=1e-5):
    m = x.mean(dim=axis, keepdim=True)
    v = x.var(dim=axis, keepdim=True, unbiased=False)
    return (x - m) / torch.sqrt(v + eps)
def _scatter_add(tgt, idx, src, axis=0):
    return tgt.clone().index_add_(axis, idx, src)
def _segment_sum(src, seg, n):
    out = torch.zeros((n,) + src.shape[1:], dtype=src.dtype)
    return out.index_add_(0, seg, src)
def _pad(x, pw):
    flat = tuple(v for pair in reversed(pw) for v in pair)
    return torch.nn.functional.pad(x, flat)

kernel_name = 'standalone__gqa_softmax__sampling'

def setup_inputs():

    _w = (lambda a: (lambda t: t.to(torch.bfloat16) if t.is_floating_point() else t)(torch.as_tensor(a)))
    B, Hq, Hkv, Sq, Sk, D = 8, 32, 16, 16, 8192, 128
    return {
        "q": _w((lambda *s: torch.randn(*s, dtype=torch.bfloat16) * 0.8)(B, Hq, Sq, D)),
        "k": _w((lambda *s: torch.randn(*s, dtype=torch.bfloat16) * 0.8)(B, Hkv, Sk, D)),
        "v": _w((lambda *s: torch.randn(*s, dtype=torch.bfloat16) * 0.05)(B, Hkv, Sk, D)),
    }

def reference(q, k, v):
    B, Hq, Sq, D = q.shape
    Hkv = k.shape[1]
    rep = Hq // Hkv
    k = (lambda x, n, axis: torch.repeat_interleave(x, n, dim=axis))(k, rep, axis=1)
    v = (lambda x, n, axis: torch.repeat_interleave(x, n, dim=axis))(v, rep, axis=1)
    scale = D ** -0.5
    scores = torch.einsum("bhqd,bhkd->bhqk", q, k) * scale
    p = _softmax(scores, axis=-1)
    return torch.einsum("bhqk,bhkd->bhqd", p, v)
```

```python
import argparse
import math
import struct

KNAME = "standalone__gqa_softmax__sampling_kernel"

HEADER = """; Kernarg layout for this problem (48 bytes, ptrs only, base s[0:1]):
"""


def f2u(x):
    return struct.unpack("<I", struct.pack("<f", x))[0]


class Asm:
    def __init__(self):
        self.lines = []

    def __call__(self, s):
        self.lines.append("    " + s)

    def label(self, s):
        self.lines.append(s + ":")

    def c(self, s):
        self.lines.append("    ; " + s)

    def text(self):
        return "\n".join(self.lines) + "\n"


def vr(b, n=1):
    return f"v{b}" if n == 1 else f"v[{b}:{b + n - 1}]"


def ar(b, n=1):
    return f"a{b}" if n == 1 else f"a[{b}:{b + n - 1}]"


def gen(NB=3, NW=4, ldk="nt", ldv="nt", mode="full", stamps=False, xcdpair=True,
        contig=False):
    a = Asm()
    NWG = 256
    CH = 1 << 20
    TILE = 8192
    NT = CH // TILE // NW
    V_KOFF, V_VOFF, V_QOFF = 1, 2, 3
    V_M0, V_L0, V_M1, V_L1 = 4, 5, 6, 7
    V_X0, V_X1, V_Z, V_W = 8, 9, 10, 11
    V_AL0, V_AL1, V_NM0, V_NM1 = 12, 13, 14, 15
    V_S = 16
    V_P = 32
    V_T = 40
    V_TK = 56
    V_WOFF = 57
    V_T2 = 58
    V_O = 64
    V_V = 128
    NVGPR = V_V + NB * 32
    A_Q = 0
    A_K = 32
    NAGPR = A_K + NB * 32
    ACC_OFF = (NVGPR + 3) // 4 * 4

    S_K, S_V, S_Q, S_OUT, S_WS, S_DBG = 16, 20, 24, 28, 32, 36
    S_WAVE, S_4096, S_CNT, S_C, S_SELLO, S_SELHI, S_L, S_PAIR = 40, 41, 42, 43, 44, 45, 46, 47
    S_T = 50
    S_ST = 60

    def srd(b):
        return f"s[{b}:{b + 3}]"

    def S(t, u):
        return V_S + (t * 2 + u) * 4

    def P(u):
        return V_P + 4 * u

    def O(u, j):
        return V_O + (u * 8 + j) * 4

    def Vb(b, i):
        return V_V + 32 * b + 4 * i

    def Kb(b, t, j):
        return A_K + 32 * b + (t * 4 + j) * 4

    def Q(u, j):
        return A_Q + (u * 4 + j) * 4

    PART_STRIDE = 32768
    WOFF = 128 * PART_STRIDE
    STAMP_OFF = 8 << 20
    WS_BYTES = (16 << 20) if stamps else (WOFF + 256 * 128)
    LDS_STAT = NW * 16 * 1024
    LDS_ROLE = LDS_STAT + NW * 2 * 16 * 8
    LDS_BYTES = LDS_ROLE + 16

    fk = (" " + ldk) if ldk else ""
    fv = (" " + ldv) if ldv else ""

    def load_k(b):
        for t in range(2):
            for j in range(4):
                so = "0" if t == 0 else f"s{S_4096}"
                a(f"buffer_load_dwordx4 {ar(Kb(b, t, j), 4)}, v{V_KOFF}, {srd(S_K)}, {so} offen offset:{j * 64}{fk}")

    def load_v(b):
        for i in range(8):
            so = "0" if i < 4 else f"s{S_4096}"
            a(f"buffer_load_dwordx4 {vr(Vb(b, i), 4)}, v{V_VOFF}, {srd(S_V)}, {so} offen offset:{(i % 4) * 1024}{fv}")

    step = TILE if contig else NW * TILE

    def adv_k():
        a(f"v_add_u32 v{V_KOFF}, {step}, v{V_KOFF}")

    def adv_v():
        a(f"v_add_u32 v{V_VOFF}, {step}, v{V_VOFF}")

    def stamp(i):
        if stamps:
            a(f"s_memrealtime s[{S_ST + 2 * i}:{S_ST + 2 * i + 1}]")

    a(f"s_cmp_ge_u32 s2, {NWG}")
    a("s_cbranch_scc1 L_end")
    stamp(0)
    a("s_load_dwordx8 s[4:11], s[0:1], 0")
    a("s_load_dwordx4 s[12:15], s[0:1], 32")
    a("v_lshrrev_b32 v3, 6, v0")
    a("v_and_b32 v0, 63, v0")
    a(f"v_readfirstlane_b32 s{S_WAVE}, v3")
    a("v_and_b32 v8, 15, v0")
    a("v_lshrrev_b32 v9, 4, v0")
    a("v_lshlrev_b32 v10, 8, v8")
    a(f"v_lshl_add_u32 v{V_QOFF}, v9, 4, v10")
    a("v_and_b32 v10, 3, v8")
    a("v_lshlrev_b32 v10, 10, v10")
    a("v_lshrrev_b32 v11, 2, v8")
    a("v_lshl_add_u32 v10, v11, 8, v10")
    a(f"v_lshl_add_u32 v{V_KOFF}, v9, 4, v10")
    a(f"v_lshlrev_b32 v{V_VOFF}, 4, v0")
    if xcdpair:
        a(f"s_and_b32 s{S_T}, s2, 0xf0")
        a(f"s_and_b32 s{S_T + 1}, s2, 7")
        a(f"s_lshl_b32 s{S_T + 1}, s{S_T + 1}, 1")
        a(f"s_or_b32 s{S_T}, s{S_T}, s{S_T + 1}")
        a(f"s_bfe_u32 s{S_T + 1}, s2, 0x10003")
        a(f"s_or_b32 s{S_L}, s{S_T}, s{S_T + 1}")
    else:
        a(f"s_mov_b32 s{S_L}, s2")
    a(f"s_lshr_b32 s{S_PAIR}, s{S_L}, 1")
    if contig:
        a(f"s_mul_i32 s{S_T}, s{S_WAVE}, {CH // NW}")
    else:
        a(f"s_lshl_b32 s{S_T}, s{S_WAVE}, 13")
    a(f"v_add_u32 v{V_KOFF}, s{S_T}, v{V_KOFF}")
    a(f"v_add_u32 v{V_VOFF}, s{S_T}, v{V_VOFF}")
    a(f"s_movk_i32 s{S_4096}, 0x1000")
    a(f"s_lshl_b32 s{S_T + 1}, s{S_L}, 20")
    a(f"s_lshl_b32 s{S_T + 2}, s{S_PAIR}, 13")
    if contig:
        a(f"s_add_u32 s{S_T + 3}, s{S_T}, {CH // NW}")
    a("s_waitcnt lgkmcnt(0)")
    for (sb, p, offr, nbytes) in ((S_K, 6, S_T + 1, CH), (S_V, 8, S_T + 1, CH), (S_Q, 4, S_T + 2, 8192)):
        a(f"s_add_u32 s{sb}, s{p}, s{offr}")
        a(f"s_addc_u32 s{sb + 1}, s{p + 1}, 0")
        if contig and sb in (S_K, S_V):
            a(f"s_mov_b32 s{sb + 2}, s{S_T + 3}")
        else:
            a(f"s_mov_b32 s{sb + 2}, {nbytes:#x}")
        a(f"s_mov_b32 s{sb + 3}, 0x20000")
    a(f"s_mov_b32 s{S_WS}, s14")
    a(f"s_mov_b32 s{S_WS + 1}, s15")
    a(f"s_mov_b32 s{S_WS + 2}, {WS_BYTES:#x}")
    a(f"s_mov_b32 s{S_WS + 3}, 0x20000")
    a(f"s_lshl_b32 s{S_T + 3}, s{S_L}, 7")
    a(f"s_add_u32 s{S_T + 3}, s{S_T + 3}, {WOFF:#x}")
    a(f"v_mov_b32 v{V_WOFF}, s{S_T + 3}")
    a(f"v_mov_b32 v{V_TK}, 0")
    a(f"s_cmp_lg_u32 s{S_WAVE}, 0")
    a("s_cbranch_scc1 L_noclr")
    a("s_mov_b64 exec, 1")
    a(f"buffer_store_dword v{V_TK}, v{V_WOFF}, {srd(S_WS)}, 0 offen sc0 sc1")
    a("s_mov_b64 exec, -1")
    a.label("L_noclr")
    load_k(0)
    adv_k()
    for u in range(2):
        for j in range(4):
            so = "0" if u == 0 else f"s{S_4096}"
            a(f"buffer_load_dwordx4 {ar(Q(u, j), 4)}, v{V_QOFF}, {srd(S_Q)}, {so} offen offset:{j * 64}")
    load_v(0)
    adv_v()
    for b in range(1, NB):
        load_k(b)
        adv_k()
        load_v(b)
        adv_v()
    a(f"s_add_u32 s{S_OUT}, s10, s{S_T + 2}")
    a(f"s_addc_u32 s{S_OUT + 1}, s11, 0")
    a(f"s_mov_b32 s{S_OUT + 2}, 0x2000")
    a(f"s_mov_b32 s{S_OUT + 3}, 0x20000")
    a(f"s_mov_b32 s{S_DBG}, s12")
    a(f"s_mov_b32 s{S_DBG + 1}, s13")
    a(f"s_mov_b32 s{S_DBG + 2}, 0x100")
    a(f"s_mov_b32 s{S_DBG + 3}, 0x20000")
    cval = (128 ** -0.5) * math.log2(math.e)
    a(f"s_mov_b32 s{S_C}, {f2u(cval):#x}")
    a(f"s_mov_b32 s{S_SELLO}, 0x05040100")
    a(f"s_mov_b32 s{S_SELHI}, 0x07060302")
    a(f"s_mov_b32 s{S_CNT}, {NT}")
    a(f"v_mov_b32 v{V_M0}, 0xff800000")
    a(f"v_mov_b32 v{V_M1}, 0xff800000")
    a(f"v_mov_b32 v{V_L0}, 0")
    a(f"v_mov_b32 v{V_L1}, 0")
    for i in range(64):
        a(f"v_mov_b32 v{V_O + i}, 0")
    NPRO = 8 + 16 * NB
    a(f"s_cmp_lg_u32 s{S_WAVE}, 0")
    a("s_cbranch_scc1 L_notick")
    a(f"s_and_b32 s{S_T}, s{S_PAIR}, 1")
    a(f"s_lshl_b32 s{S_T}, s{S_T}, 4")
    a(f"s_lshl_b32 s{S_T}, 1, s{S_T}")
    a(f"s_lshr_b32 s{S_T + 1}, s{S_PAIR}, 1")
    a(f"s_lshl_b32 s{S_T + 1}, s{S_T + 1}, 2")
    a(f"v_mov_b32 v{V_TK}, s{S_T}")
    a(f"v_mov_b32 v{V_T2}, s{S_T + 1}")
    a(f"s_waitcnt vmcnt({NPRO})")
    a("s_mov_b64 exec, 1")
    a(f"buffer_atomic_add v{V_TK}, v{V_T2}, {srd(S_DBG)}, 0 offen sc0 sc1")
    a("s_mov_b64 exec, -1")
    a.label("L_notick")

    NWAIT = 16 * NB - 8

    def tile(b, first=False):
        a.c(f"---- tile step, buffer {b}")
        a(f"s_waitcnt vmcnt({NWAIT})")
        if mode == "full":
            for j in range(4):
                for t in range(2):
                    for u in range(2):
                        cc = "0" if j == 0 else vr(S(t, u), 4)
                        a(f"v_mfma_f32_16x16x32_bf16 {vr(S(t, u), 4)}, {ar(Kb(b, t, j), 4)}, {ar(Q(u, j), 4)}, {cc}")
        load_k(b)
        adv_k()
        if mode == "full":
            for u, X, M in ((0, V_X0, V_M0), (1, V_X1, V_M1)):
                s0, s1 = S(0, u), S(1, u)
                a(f"v_max3_f32 v{X}, v{s0}, v{s0 + 1}, v{s0 + 2}")
                a(f"v_max3_f32 v{X}, v{X}, v{s0 + 3}, v{s1}")
                a(f"v_max3_f32 v{X}, v{X}, v{s1 + 1}, v{s1 + 2}")
                a(f"v_max3_f32 v{X}, v{X}, v{s1 + 3}, v{M}")
            a("s_nop 1")
            a(f"v_permlane32_swap_b32 v{V_X0}, v{V_X1}")
            a(f"v_max_f32 v{V_Z}, v{V_X0}, v{V_X1}")
            a(f"v_mov_b32 v{V_W}, v{V_Z}")
            a("s_nop 1")
            a(f"v_permlane16_swap_b32 v{V_Z}, v{V_W}")
            a(f"v_max_f32 v{V_X0}, v{V_Z}, v{V_W}")
            a(f"v_mov_b32 v{V_X1}, v{V_X0}")
            a("s_nop 1")
            a(f"v_permlane32_swap_b32 v{V_X0}, v{V_X1}")
            a(f"v_sub_f32 v{V_AL0}, v{V_M0}, v{V_X0}")
            a(f"v_sub_f32 v{V_AL1}, v{V_M1}, v{V_X1}")
            a(f"v_mul_f32 v{V_NM0}, s{S_C}, v{V_X0}")
            a(f"v_mul_f32 v{V_NM1}, s{S_C}, v{V_X1}")
            a(f"v_mul_f32 v{V_AL0}, s{S_C}, v{V_AL0}")
            a(f"v_mul_f32 v{V_AL1}, s{S_C}, v{V_AL1}")
            a(f"v_mov_b32 v{V_M0}, v{V_X0}")
            a(f"v_mov_b32 v{V_M1}, v{V_X1}")
            a(f"v_exp_f32 v{V_AL0}, v{V_AL0}")
            a(f"v_exp_f32 v{V_AL1}, v{V_AL1}")
            for u, NM in ((0, V_NM0), (1, V_NM1)):
                for t in range(2):
                    for r in range(4):
                        s = S(t, u) + r
                        a(f"v_fma_f32 v{s}, v{s}, s{S_C}, -v{NM}")
            for u in range(2):
                for t in range(2):
                    for r in range(4):
                        s = S(t, u) + r
                        a(f"v_exp_f32 v{s}, v{s}")
            for u, AL in ((0, V_AL0), (1, V_AL1)):
                for j in range(8):
                    for r in range(4):
                        o = O(u, j) + r
                        a(f"v_mul_f32 v{o}, v{o}, v{AL}")
            for u, L, AL in ((0, V_L0, V_AL0), (1, V_L1, V_AL1)):
                s0, s1 = S(0, u), S(1, u)
                a(f"v_fma_f32 v{L}, v{L}, v{AL}, v{s0}")
                a(f"v_add_f32 v{V_Z}, v{s0 + 1}, v{s0 + 2}")
                a(f"v_add_f32 v{V_W}, v{s0 + 3}, v{s1}")
                a(f"v_add_f32 v{L}, v{L}, v{s1 + 1}")
                a(f"v_add_f32 v{V_Z}, v{V_Z}, v{s1 + 2}")
                a(f"v_add_f32 v{V_W}, v{V_W}, v{s1 + 3}")
                a(f"v_add_f32 v{L}, v{L}, v{V_Z}")
                a(f"v_add_f32 v{L}, v{L}, v{V_W}")
            for u in range(2):
                for t in range(2):
                    for x in range(2):
                        s = S(t, u) + 2 * x
                        a(f"v_cvt_pk_bf16_f32 v{P(u) + 2 * t + x}, v{s}, v{s + 1}")
        a(f"s_waitcnt vmcnt({NWAIT})")
        if mode == "full":
            def perms(j):
                w, h = j // 2, j % 2
                T = V_T + 4 * (j % 4)
                sel = S_SELHI if h else S_SELLO
                for x in range(4):
                    a(f"v_perm_b32 v{T + x}, v{Vb(b, 2 * x + 1) + w}, v{Vb(b, 2 * x) + w}, s{sel}")
            perms(0)
            for j in range(8):
                if j + 1 < 8:
                    perms(j + 1)
                else:
                    load_v(b)
                T = V_T + 4 * (j % 4)
                for u in range(2):
                    a(f"v_mfma_f32_16x16x32_bf16 {vr(O(u, j), 4)}, {vr(T, 4)}, {vr(P(u), 4)}, {vr(O(u, j), 4)}")
        else:
            load_v(b)
        adv_v()

    a(".p2align 6")
    a.label("L_loop")
    for b in range(NB):
        tile(b)
        a(f"s_sub_u32 s{S_CNT}, s{S_CNT}, 1")
        a(f"s_cmp_eq_u32 s{S_CNT}, 0")
        if b + 1 < NB:
            a("s_cbranch_scc1 L_done")
        else:
            a("s_cbranch_scc0 L_loop")
    a.label("L_done")
    stamp(1)
    a("s_waitcnt vmcnt(0)")
    a(f"s_cmp_lg_u32 s{S_WAVE}, 0")
    a("s_cbranch_scc1 L_nofin")
    a(f"s_and_b32 s{S_T}, s{S_PAIR}, 1")
    a(f"s_lshl_b32 s{S_T}, s{S_T}, 4")
    a(f"v_lshrrev_b32 v{V_TK}, s{S_T}, v{V_TK}")
    a(f"v_and_b32 v{V_TK}, 1, v{V_TK}")
    a(f"v_lshlrev_b32 v{V_TK}, 7, v{V_TK}")
    a(f"v_xor_b32 v{V_WOFF}, v{V_WOFF}, v{V_TK}")
    a(f"v_mov_b32 v{V_TK}, 1")
    a("s_mov_b64 exec, 1")
    a(f"buffer_atomic_add v{V_TK}, v{V_WOFF}, {srd(S_WS)}, 0 offen sc0 sc1")
    a("s_mov_b64 exec, -1")
    a.label("L_nofin")
    a(f"v_mov_b32 v{V_X0}, v{V_L0}")
    a(f"v_mov_b32 v{V_X1}, v{V_L1}")
    a("s_nop 1")
    a(f"v_permlane32_swap_b32 v{V_X0}, v{V_X1}")
    a(f"v_add_f32 v{V_Z}, v{V_X0}, v{V_X1}")
    a(f"v_mov_b32 v{V_W}, v{V_Z}")
    a("s_nop 1")
    a(f"v_permlane16_swap_b32 v{V_Z}, v{V_W}")
    a(f"v_add_f32 v{V_L0}, v{V_Z}, v{V_W}")
    a(f"v_mov_b32 v{V_L1}, v{V_L0}")
    a("s_nop 1")
    a(f"v_permlane32_swap_b32 v{V_L0}, v{V_L1}")
    a(f"s_lshl_b32 s{S_T}, s{S_WAVE}, 14")
    a(f"v_lshl_add_u32 v{V_T2}, v0, 4, s{S_T}")
    for i in range(16):
        a(f"ds_write_b128 v{V_T2}, {vr(V_O + 4 * i, 4)} offset:{i * 1024}")
    a(f"v_and_b32 v{V_T2 + 1}, 15, v0")
    a(f"v_lshlrev_b32 v{V_T2 + 1}, 3, v{V_T2 + 1}")
    a(f"s_lshl_b32 s{S_T}, s{S_WAVE}, 8")
    a(f"s_add_u32 s{S_T}, s{S_T}, {LDS_STAT}")
    a(f"v_add_u32 v{V_T2 + 2}, s{S_T}, v{V_T2 + 1}")
    a(f"ds_write_b64 v{V_T2 + 2}, {vr(V_M0, 2)}")
    a(f"ds_write_b64 v{V_T2 + 2}, {vr(V_M1, 2)} offset:128")
    a(f"s_cmp_lg_u32 s{S_WAVE}, 0")
    a("s_cbranch_scc1 L_norole")
    a(f"v_mov_b32 v{V_T2 + 3}, {LDS_ROLE}")
    a("s_waitcnt vmcnt(0)")
    a("s_mov_b64 exec, 1")
    a(f"ds_write_b32 v{V_T2 + 3}, v{V_TK}")
    a("s_mov_b64 exec, -1")
    a.label("L_norole")
    a("s_waitcnt lgkmcnt(0)")
    a("s_barrier")
    assert NW == 4
    R_ST = V_S
    R_O = V_V
    a(f"s_lshr_b32 s{S_T}, s{S_WAVE}, 1")
    a(f"s_lshl_b32 s{S_T}, s{S_T}, 7")
    a(f"s_add_u32 s{S_T}, s{S_T}, {LDS_STAT}")
    a(f"v_add_u32 v{V_T2 + 2}, s{S_T}, v{V_T2 + 1}")
    a(f"v_mov_b32 v{V_T2 + 3}, {LDS_ROLE}")
    a(f"ds_read_b32 v{V_T2 + 3}, v{V_T2 + 3}")
    for w in range(NW):
        a(f"ds_read_b64 {vr(R_ST + 2 * w, 2)}, v{V_T2 + 2} offset:{w * 256}")
    a(f"s_lshl_b32 s{S_T}, s{S_WAVE}, 12")
    a(f"v_lshl_add_u32 v{V_T2}, v0, 4, s{S_T}")
    for w in range(NW):
        for i in range(4):
            a(f"ds_read_b128 {vr(R_O + 16 * w + 4 * i, 4)}, v{V_T2} offset:{w * 16384 + i * 1024}")
    a("s_waitcnt lgkmcnt(14)")
    V_MM, V_LL = V_M0, V_L0
    a(f"v_max3_f32 v{V_MM}, v{R_ST}, v{R_ST + 2}, v{R_ST + 4}")
    a(f"v_max_f32 v{V_MM}, v{V_MM}, v{R_ST + 6}")
    a(f"v_readfirstlane_b32 s{S_T + 4}, v{V_T2 + 3}")
    for w in range(NW):
        a(f"v_sub_f32 v{R_ST + 2 * w}, v{R_ST + 2 * w}, v{V_MM}")
    for w in range(NW):
        a(f"v_mul_f32 v{R_ST + 2 * w}, s{S_C}, v{R_ST + 2 * w}")
    for w in range(NW):
        a(f"v_exp_f32 v{R_ST + 2 * w}, v{R_ST + 2 * w}")
    a("s_nop 0")
    a(f"v_mul_f32 v{V_LL}, v{R_ST}, v{R_ST + 1}")
    for w in range(1, NW):
        a(f"v_fma_f32 v{V_LL}, v{R_ST + 2 * w}, v{R_ST + 2 * w + 1}, v{V_LL}")
    a("s_waitcnt lgkmcnt(0)")
    R_F = V_O
    for i in range(16):
        a(f"v_mul_f32 v{R_F + i}, v{R_ST}, v{R_O + i}")
    for w in range(1, NW):
        for i in range(16):
            a(f"v_fma_f32 v{R_F + i}, v{R_ST + 2 * w}, v{R_O + 16 * w + i}, v{R_F + i}")
    a(f"s_lshl_b32 s{S_T}, s{S_PAIR}, 15")
    a(f"v_add_u32 v{V_T2}, s{S_T}, v{V_T2}")
    a(f"s_lshl_b32 s{S_T + 1}, s{S_WAVE}, 9")
    a(f"s_add_u32 s{S_T + 1}, s{S_T + 1}, s{S_T}")
    a(f"s_add_u32 s{S_T + 1}, s{S_T + 1}, 16384")
    a(f"v_lshl_add_u32 v{V_T2 + 2}, v0, 3, s{S_T + 1}")
    a(f"s_cmp_lg_u32 s{S_T + 4}, 0")
    a("s_cbranch_scc1 L_consumer")
    for i in range(4):
        a(f"buffer_store_dwordx4 {vr(R_F + 4 * i, 4)}, v{V_T2}, {srd(S_WS)}, 0 offen offset:{i * 1024} sc0 sc1")
    a(f"buffer_store_dwordx2 {vr(V_MM, 2)}, v{V_T2 + 2}, {srd(S_WS)}, 0 offen sc0 sc1")
    a("s_waitcnt vmcnt(0)")
    a("s_barrier")
    a(f"s_cmp_lg_u32 s{S_WAVE}, 0")
    a("s_cbranch_scc1 L_fin")
    a(f"v_mov_b32 v{V_TK}, 0x100")
    a("s_mov_b64 exec, 1")
    a(f"buffer_atomic_add v{V_TK}, v{V_WOFF}, {srd(S_WS)}, 0 offen sc1")
    a("s_mov_b64 exec, -1")
    a("s_branch L_fin")
    a.label("L_consumer")
    a(f"s_cmp_ge_u32 s{S_T + 4}, 0x100")
    a("s_cbranch_scc1 L_ready")
    a(f"s_cmp_lg_u32 s{S_WAVE}, 0")
    a("s_cbranch_scc1 L_polled")
    a("s_mov_b64 exec, 1")
    a.label("L_poll")
    a(f"buffer_load_dword v{V_TK}, v{V_WOFF}, {srd(S_WS)}, 0 offen sc0 sc1")
    a("s_waitcnt vmcnt(0)")
    a(f"v_readfirstlane_b32 s{S_T + 5}, v{V_TK}")
    a("s_nop 3")
    a(f"s_cmp_lt_u32 s{S_T + 5}, 0x100")
    a("s_cbranch_scc1 L_poll")
    a("s_mov_b64 exec, -1")
    a.label("L_polled")
    a("s_barrier")
    a.label("L_ready")
    R_P = V_V
    a(f"buffer_load_dwordx2 {vr(V_M1, 2)}, v{V_T2 + 2}, {srd(S_WS)}, 0 offen sc0 sc1")
    for i in range(4):
        a(f"buffer_load_dwordx4 {vr(R_P + 4 * i, 4)}, v{V_T2}, {srd(S_WS)}, 0 offen offset:{i * 1024} sc0 sc1")
    a(f"v_and_b32 v{V_T2 + 1}, 15, v0")
    a(f"v_lshlrev_b32 v{V_T2 + 1}, 8, v{V_T2 + 1}")
    a(f"v_lshrrev_b32 v{V_T2 + 3}, 4, v0")
    a(f"v_lshl_add_u32 v{V_T2 + 1}, v{V_T2 + 3}, 6, v{V_T2 + 1}")
    a(f"s_lshr_b32 s{S_T}, s{S_WAVE}, 1")
    a(f"s_lshl_b32 s{S_T}, s{S_T}, 12")
    a(f"s_and_b32 s{S_T + 1}, s{S_WAVE}, 1")
    a(f"s_lshl_b32 s{S_T + 1}, s{S_T + 1}, 3")
    a(f"s_add_u32 s{S_T}, s{S_T}, s{S_T + 1}")
    a(f"v_add_u32 v{V_T2 + 1}, s{S_T}, v{V_T2 + 1}")
    a("s_waitcnt vmcnt(4)")
    a(f"v_max_f32 v{V_X0}, v{V_MM}, v{V_M1}")
    a(f"v_sub_f32 v{V_AL0}, v{V_MM}, v{V_X0}")
    a(f"v_sub_f32 v{V_AL1}, v{V_M1}, v{V_X0}")
    a(f"v_mul_f32 v{V_AL0}, s{S_C}, v{V_AL0}")
    a(f"v_mul_f32 v{V_AL1}, s{S_C}, v{V_AL1}")
    a(f"v_exp_f32 v{V_AL0}, v{V_AL0}")
    a(f"v_exp_f32 v{V_AL1}, v{V_AL1}")
    a("s_nop 0")
    a(f"v_mul_f32 v{V_Z}, v{V_AL0}, v{V_LL}")
    a(f"v_fma_f32 v{V_Z}, v{V_AL1}, v{V_L1}, v{V_Z}")
    a(f"v_rcp_f32 v{V_Z}, v{V_Z}")
    a("s_nop 0")
    a(f"v_mul_f32 v{V_AL0}, v{V_AL0}, v{V_Z}")
    a(f"v_mul_f32 v{V_AL1}, v{V_AL1}, v{V_Z}")
    for i in range(16):
        a(f"v_mul_f32 v{R_F + i}, v{V_AL0}, v{R_F + i}")
    a("s_waitcnt vmcnt(0)")
    for i in range(16):
        a(f"v_fma_f32 v{R_F + i}, v{V_AL1}, v{R_P + i}, v{R_F + i}")
    for r in range(4):
        a(f"v_cvt_pk_bf16_f32 v{V_S + 2 * r}, v{R_F + r}, v{R_F + 4 + r}")
        a(f"v_cvt_pk_bf16_f32 v{V_S + 2 * r + 1}, v{R_F + 8 + r}, v{R_F + 12 + r}")
    for r in range(4):
        a(f"buffer_store_dwordx2 {vr(V_S + 2 * r, 2)}, v{V_T2 + 1}, {srd(S_OUT)}, 0 offen offset:{16 * r}")
    a.label("L_fin")
    if stamps:
        a("s_waitcnt vmcnt(0)")
        stamp(2)
        a(f"s_getreg_b32 s{S_ST + 6}, hwreg(HW_REG_XCC_ID)")
        a(f"s_getreg_b32 s{S_ST + 7}, hwreg(HW_REG_HW_ID)")
        a("s_waitcnt lgkmcnt(0)")
        for i in range(8):
            a(f"v_mov_b32 v{V_S + i}, s{S_ST + i}")
        a(f"s_lshl_b32 s{S_T}, s2, 2")
        a(f"s_add_u32 s{S_T}, s{S_T}, s{S_WAVE}")
        a(f"s_lshl_b32 s{S_T}, s{S_T}, 5")
        a(f"s_add_u32 s{S_T}, s{S_T}, {STAMP_OFF:#x}")
        a(f"v_mov_b32 v{V_T2}, s{S_T}")
        a("s_mov_b64 exec, 1")
        a(f"buffer_store_dwordx4 {vr(V_S, 4)}, v{V_T2}, {srd(S_WS)}, 0 offen")
        a(f"buffer_store_dwordx4 {vr(V_S + 4, 4)}, v{V_T2}, {srd(S_WS)}, 0 offen offset:16")
    a.label("L_end")
    a("s_endpgm")

    out = HEADER
    out += f"; @launch grid=({NWG},1,1) block=({64 * NW},1,1) lds={LDS_BYTES}\n"
    out += '.amdgcn_target "amdgcn-amd-amdhsa--gfx950"\n.text\n'
    out += f".globl {KNAME}\n.p2align 8\n.type {KNAME},@function\n{KNAME}:\n"
    out += a.text()
    out += '.section .rodata,"a"\n.p2align 6\n'
    out += f".amdhsa_kernel {KNAME}\n"
    out += f"  .amdhsa_next_free_vgpr {ACC_OFF + NAGPR}\n"
    out += "  .amdhsa_next_free_sgpr 80\n"
    out += f"  .amdhsa_accum_offset {ACC_OFF}\n"
    out += "  .amdhsa_group_segment_fixed_size 0\n"
    out += "  .amdhsa_kernarg_size 48\n"
    out += "  .amdhsa_user_sgpr_count 2\n"
    out += "  .amdhsa_user_sgpr_kernarg_segment_ptr 1\n"
    out += "  .amdhsa_system_sgpr_workgroup_id_x 1\n"
    out += ".end_amdhsa_kernel\n"
    return out


if __name__ == "__main__":
    ap = argparse.ArgumentParser()
    ap.add_argument("-o", default="/dev/stdout")
    ap.add_argument("--nb", type=int, default=3)
    ap.add_argument("--ldk", default="nt")
    ap.add_argument("--ldv", default="nt")
    ap.add_argument("--mode", default="full")
    ap.add_argument("--stamps", action="store_true")
    ap.add_argument("--noxcd", action="store_true")
    ap.add_argument("--contig", action="store_true")
    args = ap.parse_args()
    txt = gen(NB=args.nb, ldk=args.ldk, ldv=args.ldv, mode=args.mode, stamps=args.stamps,
              xcdpair=not args.noxcd, contig=args.contig)
    open(args.o, "w").write(txt)
```

```python
import argparse
import math
import struct

KNAME = "standalone__gqa_softmax__sampling_kernel"

HEADER = """; Kernarg layout for this problem (48 bytes, ptrs only, base s[0:1]):
"""


def f2u(x):
    return struct.unpack("<I", struct.pack("<f", x))[0]


class Asm:
    def __init__(self):
        self.lines = []

    def __call__(self, s):
        self.lines.append("    " + s)

    def label(self, s):
        self.lines.append(s + ":")

    def c(self, s):
        self.lines.append("    ; " + s)

    def text(self):
        return "\n".join(self.lines) + "\n"


def vr(b, n=1):
    return f"v{b}" if n == 1 else f"v[{b}:{b + n - 1}]"


def ar(b, n=1):
    return f"a{b}" if n == 1 else f"a[{b}:{b + n - 1}]"


def gen(NB=3, NW=4, ldk="nt", ldv="nt", mode="full", stamps=False, xcdpair=True,
        contig=False, dbgstamps=False):
    a = Asm()
    NWG = 256
    CH = 1 << 20
    TILE = 8192
    NT = CH // TILE // NW
    V_KOFF, V_VOFF, V_QOFF = 1, 2, 3
    V_M0, V_L0, V_M1, V_L1 = 4, 5, 6, 7
    V_X0, V_X1, V_Z, V_W = 8, 9, 10, 11
    V_AL0, V_AL1, V_NM0, V_NM1 = 12, 13, 14, 15
    V_S = 16
    V_P = 32
    V_T = 40
    V_TK = 56
    V_WOFF = 57
    V_T2 = 58
    V_O = 64
    V_V = 128
    NVGPR = V_V + NB * 32
    A_Q = 0
    A_K = 32
    NAGPR = A_K + NB * 32
    ACC_OFF = (NVGPR + 3) // 4 * 4

    S_K, S_V, S_Q, S_OUT, S_WS, S_DBG = 16, 20, 24, 28, 32, 36
    S_WAVE, S_4096, S_CNT, S_C, S_SELLO, S_SELHI, S_L, S_PAIR = 40, 41, 42, 43, 44, 45, 46, 47
    S_T = 50
    S_ST = 60

    def srd(b):
        return f"s[{b}:{b + 3}]"

    def S(t, u):
        return V_S + (t * 2 + u) * 4

    def P(u):
        return V_P + 4 * u

    def O(u, j):
        return V_O + (u * 8 + j) * 4

    def Vb(b, i):
        return V_V + 32 * b + 4 * i

    def Kb(b, t, j):
        return A_K + 32 * b + (t * 4 + j) * 4

    def Q(u, j):
        return A_Q + (u * 4 + j) * 4

    PART_STRIDE = 32768
    WOFF = 128 * PART_STRIDE
    STAMP_OFF = 8 << 20
    WS_BYTES = (16 << 20) if stamps else (WOFF + 256 * 128)
    LDS_STAT = NW * 16 * 1024
    LDS_ROLE = LDS_STAT + NW * 2 * 16 * 8
    LDS_BYTES = LDS_ROLE + 16

    fk = (" " + ldk) if ldk else ""
    fv = (" " + ldv) if ldv else ""

    def load_k(b):
        for t in range(2):
            for j in range(4):
                so = "0" if t == 0 else f"s{S_4096}"
                a(f"buffer_load_dwordx4 {ar(Kb(b, t, j), 4)}, v{V_KOFF}, {srd(S_K)}, {so} offen offset:{j * 64}{fk}")

    def load_v(b):
        for i in range(8):
            so = "0" if i < 4 else f"s{S_4096}"
            a(f"buffer_load_dwordx4 {vr(Vb(b, i), 4)}, v{V_VOFF}, {srd(S_V)}, {so} offen offset:{(i % 4) * 1024}{fv}")

    step = TILE if contig else NW * TILE

    def adv_k():
        a(f"v_add_u32 v{V_KOFF}, {step}, v{V_KOFF}")

    def adv_v():
        a(f"v_add_u32 v{V_VOFF}, {step}, v{V_VOFF}")

    def stamp(i):
        if stamps or dbgstamps:
            a(f"s_memrealtime s[{S_ST + 2 * i}:{S_ST + 2 * i + 1}]")

    a(f"s_cmp_ge_u32 s2, {NWG}")
    a("s_cbranch_scc1 L_end")
    stamp(0)
    a("s_load_dwordx8 s[4:11], s[0:1], 0")
    a("s_load_dwordx4 s[12:15], s[0:1], 32")
    a("v_lshrrev_b32 v3, 6, v0")
    a("v_and_b32 v0, 63, v0")
    a(f"v_readfirstlane_b32 s{S_WAVE}, v3")
    a("v_and_b32 v8, 15, v0")
    a("v_lshrrev_b32 v9, 4, v0")
    a("v_lshlrev_b32 v10, 8, v8")
    a(f"v_lshl_add_u32 v{V_QOFF}, v9, 4, v10")
    a("v_and_b32 v10, 3, v8")
    a("v_lshlrev_b32 v10, 10, v10")
    a("v_lshrrev_b32 v11, 2, v8")
    a("v_lshl_add_u32 v10, v11, 8, v10")
    a(f"v_lshl_add_u32 v{V_KOFF}, v9, 4, v10")
    a(f"v_lshlrev_b32 v{V_VOFF}, 4, v0")
    if xcdpair:
        a(f"s_and_b32 s{S_T}, s2, 0xf0")
        a(f"s_and_b32 s{S_T + 1}, s2, 7")
        a(f"s_lshl_b32 s{S_T + 1}, s{S_T + 1}, 1")
        a(f"s_or_b32 s{S_T}, s{S_T}, s{S_T + 1}")
        a(f"s_bfe_u32 s{S_T + 1}, s2, 0x10003")
        a(f"s_or_b32 s{S_L}, s{S_T}, s{S_T + 1}")
    else:
        a(f"s_mov_b32 s{S_L}, s2")
    a(f"s_lshr_b32 s{S_PAIR}, s{S_L}, 1")
    if contig:
        a(f"s_mul_i32 s{S_T}, s{S_WAVE}, {CH // NW}")
    else:
        a(f"s_lshl_b32 s{S_T}, s{S_WAVE}, 13")
    a(f"v_add_u32 v{V_KOFF}, s{S_T}, v{V_KOFF}")
    a(f"v_add_u32 v{V_VOFF}, s{S_T}, v{V_VOFF}")
    a(f"s_movk_i32 s{S_4096}, 0x1000")
    a(f"s_lshl_b32 s{S_T + 1}, s{S_L}, 20")
    a(f"s_lshl_b32 s{S_T + 2}, s{S_PAIR}, 13")
    if contig:
        a(f"s_add_u32 s{S_T + 3}, s{S_T}, {CH // NW}")
    a("s_waitcnt lgkmcnt(0)")
    for (sb, p, offr, nbytes) in ((S_K, 6, S_T + 1, CH), (S_V, 8, S_T + 1, CH), (S_Q, 4, S_T + 2, 8192)):
        a(f"s_add_u32 s{sb}, s{p}, s{offr}")
        a(f"s_addc_u32 s{sb + 1}, s{p + 1}, 0")
        if contig and sb in (S_K, S_V):
            a(f"s_mov_b32 s{sb + 2}, s{S_T + 3}")
        else:
            a(f"s_mov_b32 s{sb + 2}, {nbytes:#x}")
        a(f"s_mov_b32 s{sb + 3}, 0x20000")
    a(f"s_mov_b32 s{S_WS}, s14")
    a(f"s_mov_b32 s{S_WS + 1}, s15")
    a(f"s_mov_b32 s{S_WS + 2}, {WS_BYTES:#x}")
    a(f"s_mov_b32 s{S_WS + 3}, 0x20000")
    a(f"s_lshl_b32 s{S_T + 3}, s{S_L}, 7")
    a(f"s_add_u32 s{S_T + 3}, s{S_T + 3}, {WOFF:#x}")
    a(f"v_mov_b32 v{V_WOFF}, s{S_T + 3}")
    a(f"v_mov_b32 v{V_TK}, 0")
    a(f"s_cmp_lg_u32 s{S_WAVE}, 0")
    a("s_cbranch_scc1 L_noclr")
    a("s_mov_b64 exec, 1")
    a(f"buffer_store_dword v{V_TK}, v{V_WOFF}, {srd(S_WS)}, 0 offen sc0 sc1")
    a("s_mov_b64 exec, -1")
    a.label("L_noclr")
    load_k(0)
    adv_k()
    for u in range(2):
        for j in range(4):
            so = "0" if u == 0 else f"s{S_4096}"
            a(f"buffer_load_dwordx4 {ar(Q(u, j), 4)}, v{V_QOFF}, {srd(S_Q)}, {so} offen offset:{j * 64}")
    load_v(0)
    adv_v()
    for b in range(1, NB):
        load_k(b)
        adv_k()
        load_v(b)
        adv_v()
    a(f"s_add_u32 s{S_OUT}, s10, s{S_T + 2}")
    a(f"s_addc_u32 s{S_OUT + 1}, s11, 0")
    a(f"s_mov_b32 s{S_OUT + 2}, 0x2000")
    a(f"s_mov_b32 s{S_OUT + 3}, 0x20000")
    a(f"s_mov_b32 s{S_DBG}, s12")
    a(f"s_mov_b32 s{S_DBG + 1}, s13")
    a(f"s_mov_b32 s{S_DBG + 2}, 0x100")
    a(f"s_mov_b32 s{S_DBG + 3}, 0x20000")
    cval = (128 ** -0.5) * math.log2(math.e)
    a(f"s_mov_b32 s{S_C}, {f2u(cval):#x}")
    a(f"s_mov_b32 s{S_SELLO}, 0x05040100")
    a(f"s_mov_b32 s{S_SELHI}, 0x07060302")
    a(f"s_mov_b32 s{S_CNT}, {NT}")
    a(f"v_mov_b32 v{V_M0}, 0xff800000")
    a(f"v_mov_b32 v{V_M1}, 0xff800000")
    a(f"v_mov_b32 v{V_L0}, 0")
    a(f"v_mov_b32 v{V_L1}, 0")
    for i in range(64):
        a(f"v_mov_b32 v{V_O + i}, 0")
    NPRO = 8 + 16 * NB
    a(f"s_cmp_lg_u32 s{S_WAVE}, 0")
    a("s_cbranch_scc1 L_notick")
    a(f"s_and_b32 s{S_T}, s{S_PAIR}, 3")
    a(f"s_lshl_b32 s{S_T}, s{S_T}, 3")
    a(f"s_lshl_b32 s{S_T}, 1, s{S_T}")
    a(f"s_and_b32 s{S_T + 1}, s{S_PAIR}, 0xfc")
    a(f"s_add_u32 s{S_T + 1}, s{S_T + 1}, 128")
    a(f"v_mov_b32 v{V_TK}, s{S_T}")
    a(f"v_mov_b32 v{V_T2}, s{S_T + 1}")
    a(f"s_waitcnt vmcnt({NPRO})")
    a("s_mov_b64 exec, 1")
    a(f"buffer_atomic_add v{V_TK}, v{V_T2}, {srd(S_DBG)}, 0 offen sc0 sc1")
    a("s_mov_b64 exec, -1")
    a.label("L_notick")

    NWAIT = 16 * NB - 8

    def tile(b, first=False):
        a.c(f"---- tile step, buffer {b}")
        a(f"s_waitcnt vmcnt({NWAIT})")
        if mode == "full":
            for j in range(4):
                for t in range(2):
                    for u in range(2):
                        cc = "0" if j == 0 else vr(S(t, u), 4)
                        a(f"v_mfma_f32_16x16x32_bf16 {vr(S(t, u), 4)}, {ar(Kb(b, t, j), 4)}, {ar(Q(u, j), 4)}, {cc}")
        load_k(b)
        adv_k()
        if mode == "full":
            for u, X, M in ((0, V_X0, V_M0), (1, V_X1, V_M1)):
                s0, s1 = S(0, u), S(1, u)
                a(f"v_max3_f32 v{X}, v{s0}, v{s0 + 1}, v{s0 + 2}")
                a(f"v_max3_f32 v{X}, v{X}, v{s0 + 3}, v{s1}")
                a(f"v_max3_f32 v{X}, v{X}, v{s1 + 1}, v{s1 + 2}")
                a(f"v_max3_f32 v{X}, v{X}, v{s1 + 3}, v{M}")
            a("s_nop 1")
            a(f"v_permlane32_swap_b32 v{V_X0}, v{V_X1}")
            a(f"v_max_f32 v{V_Z}, v{V_X0}, v{V_X1}")
            a(f"v_mov_b32 v{V_W}, v{V_Z}")
            a("s_nop 1")
            a(f"v_permlane16_swap_b32 v{V_Z}, v{V_W}")
            a(f"v_max_f32 v{V_X0}, v{V_Z}, v{V_W}")
            a(f"v_mov_b32 v{V_X1}, v{V_X0}")
            a("s_nop 1")
            a(f"v_permlane32_swap_b32 v{V_X0}, v{V_X1}")
            a(f"v_sub_f32 v{V_AL0}, v{V_M0}, v{V_X0}")
            a(f"v_sub_f32 v{V_AL1}, v{V_M1}, v{V_X1}")
            a(f"v_mul_f32 v{V_NM0}, s{S_C}, v{V_X0}")
            a(f"v_mul_f32 v{V_NM1}, s{S_C}, v{V_X1}")
            a(f"v_mul_f32 v{V_AL0}, s{S_C}, v{V_AL0}")
            a(f"v_mul_f32 v{V_AL1}, s{S_C}, v{V_AL1}")
            a(f"v_mov_b32 v{V_M0}, v{V_X0}")
            a(f"v_mov_b32 v{V_M1}, v{V_X1}")
            a(f"v_exp_f32 v{V_AL0}, v{V_AL0}")
            a(f"v_exp_f32 v{V_AL1}, v{V_AL1}")
            for u, NM in ((0, V_NM0), (1, V_NM1)):
                for t in range(2):
                    for r in range(4):
                        s = S(t, u) + r
                        a(f"v_fma_f32 v{s}, v{s}, s{S_C}, -v{NM}")
            for u in range(2):
                for t in range(2):
                    for r in range(4):
                        s = S(t, u) + r
                        a(f"v_exp_f32 v{s}, v{s}")
            for u, AL in ((0, V_AL0), (1, V_AL1)):
                for j in range(8):
                    for r in range(4):
                        o = O(u, j) + r
                        a(f"v_mul_f32 v{o}, v{o}, v{AL}")
            for u, L, AL in ((0, V_L0, V_AL0), (1, V_L1, V_AL1)):
                s0, s1 = S(0, u), S(1, u)
                a(f"v_fma_f32 v{L}, v{L}, v{AL}, v{s0}")
                a(f"v_add_f32 v{V_Z}, v{s0 + 1}, v{s0 + 2}")
                a(f"v_add_f32 v{V_W}, v{s0 + 3}, v{s1}")
                a(f"v_add_f32 v{L}, v{L}, v{s1 + 1}")
                a(f"v_add_f32 v{V_Z}, v{V_Z}, v{s1 + 2}")
                a(f"v_add_f32 v{V_W}, v{V_W}, v{s1 + 3}")
                a(f"v_add_f32 v{L}, v{L}, v{V_Z}")
                a(f"v_add_f32 v{L}, v{L}, v{V_W}")
            for u in range(2):
                for t in range(2):
                    for x in range(2):
                        s = S(t, u) + 2 * x
                        a(f"v_cvt_pk_bf16_f32 v{P(u) + 2 * t + x}, v{s}, v{s + 1}")
        a(f"s_waitcnt vmcnt({NWAIT})")
        if mode == "full":
            def perms(j):
                w, h = j // 2, j % 2
                T = V_T + 4 * (j % 4)
                sel = S_SELHI if h else S_SELLO
                for x in range(4):
                    a(f"v_perm_b32 v{T + x}, v{Vb(b, 2 * x + 1) + w}, v{Vb(b, 2 * x) + w}, s{sel}")
            perms(0)
            for j in range(8):
                if j + 1 < 8:
                    perms(j + 1)
                else:
                    load_v(b)
                T = V_T + 4 * (j % 4)
                for u in range(2):
                    a(f"v_mfma_f32_16x16x32_bf16 {vr(O(u, j), 4)}, {vr(T, 4)}, {vr(P(u), 4)}, {vr(O(u, j), 4)}")
        else:
            load_v(b)
        adv_v()

    a(".p2align 6")
    a.label("L_loop")
    for b in range(NB):
        tile(b)
        a(f"s_sub_u32 s{S_CNT}, s{S_CNT}, 1")
        a(f"s_cmp_eq_u32 s{S_CNT}, 0")
        if b + 1 < NB:
            a("s_cbranch_scc1 L_done")
        else:
            a("s_cbranch_scc0 L_loop")
    a.label("L_done")
    stamp(1)
    a("s_waitcnt vmcnt(0)")
    a(f"s_cmp_lg_u32 s{S_WAVE}, 0")
    a("s_cbranch_scc1 L_nofin")
    a(f"s_and_b32 s{S_T}, s{S_PAIR}, 3")
    a(f"s_lshl_b32 s{S_T}, s{S_T}, 3")
    a(f"v_lshrrev_b32 v{V_TK}, s{S_T}, v{V_TK}")
    a(f"v_and_b32 v{V_TK}, 1, v{V_TK}")
    a(f"v_lshlrev_b32 v{V_TK}, 7, v{V_TK}")
    a(f"v_xor_b32 v{V_WOFF}, v{V_WOFF}, v{V_TK}")
    a(f"v_mov_b32 v{V_TK}, 1")
    a("s_mov_b64 exec, 1")
    a(f"buffer_atomic_add v{V_TK}, v{V_WOFF}, {srd(S_WS)}, 0 offen sc0 sc1")
    a("s_mov_b64 exec, -1")
    a.label("L_nofin")
    a(f"v_mov_b32 v{V_X0}, v{V_L0}")
    a(f"v_mov_b32 v{V_X1}, v{V_L1}")
    a("s_nop 1")
    a(f"v_permlane32_swap_b32 v{V_X0}, v{V_X1}")
    a(f"v_add_f32 v{V_Z}, v{V_X0}, v{V_X1}")
    a(f"v_mov_b32 v{V_W}, v{V_Z}")
    a("s_nop 1")
    a(f"v_permlane16_swap_b32 v{V_Z}, v{V_W}")
    a(f"v_add_f32 v{V_L0}, v{V_Z}, v{V_W}")
    a(f"v_mov_b32 v{V_L1}, v{V_L0}")
    a("s_nop 1")
    a(f"v_permlane32_swap_b32 v{V_L0}, v{V_L1}")
    a(f"s_lshl_b32 s{S_T}, s{S_WAVE}, 14")
    a(f"v_lshl_add_u32 v{V_T2}, v0, 4, s{S_T}")
    for i in range(16):
        a(f"ds_write_b128 v{V_T2}, {vr(V_O + 4 * i, 4)} offset:{i * 1024}")
    a(f"v_and_b32 v{V_T2 + 1}, 15, v0")
    a(f"v_lshlrev_b32 v{V_T2 + 1}, 3, v{V_T2 + 1}")
    a(f"s_lshl_b32 s{S_T}, s{S_WAVE}, 8")
    a(f"s_add_u32 s{S_T}, s{S_T}, {LDS_STAT}")
    a(f"v_add_u32 v{V_T2 + 2}, s{S_T}, v{V_T2 + 1}")
    a(f"ds_write_b64 v{V_T2 + 2}, {vr(V_M0, 2)}")
    a(f"ds_write_b64 v{V_T2 + 2}, {vr(V_M1, 2)} offset:128")
    a(f"s_cmp_lg_u32 s{S_WAVE}, 0")
    a("s_cbranch_scc1 L_norole")
    a(f"v_mov_b32 v{V_T2 + 3}, {LDS_ROLE}")
    a("s_waitcnt vmcnt(0)")
    a("s_mov_b64 exec, 1")
    a(f"ds_write_b32 v{V_T2 + 3}, v{V_TK}")
    a("s_mov_b64 exec, -1")
    a.label("L_norole")
    a("s_waitcnt lgkmcnt(0)")
    a("s_barrier")
    assert NW == 4
    R_ST = V_S
    R_O = V_V
    a(f"s_lshr_b32 s{S_T}, s{S_WAVE}, 1")
    a(f"s_lshl_b32 s{S_T}, s{S_T}, 7")
    a(f"s_add_u32 s{S_T}, s{S_T}, {LDS_STAT}")
    a(f"v_add_u32 v{V_T2 + 2}, s{S_T}, v{V_T2 + 1}")
    a(f"v_mov_b32 v{V_T2 + 3}, {LDS_ROLE}")
    a(f"ds_read_b32 v{V_T2 + 3}, v{V_T2 + 3}")
    for w in range(NW):
        a(f"ds_read_b64 {vr(R_ST + 2 * w, 2)}, v{V_T2 + 2} offset:{w * 256}")
    a(f"s_lshl_b32 s{S_T}, s{S_WAVE}, 12")
    a(f"v_lshl_add_u32 v{V_T2}, v0, 4, s{S_T}")
    for w in range(NW):
        for i in range(4):
            a(f"ds_read_b128 {vr(R_O + 16 * w + 4 * i, 4)}, v{V_T2} offset:{w * 16384 + i * 1024}")
    a("s_waitcnt lgkmcnt(14)")
    V_MM, V_LL = V_M0, V_L0
    a(f"v_max3_f32 v{V_MM}, v{R_ST}, v{R_ST + 2}, v{R_ST + 4}")
    a(f"v_max_f32 v{V_MM}, v{V_MM}, v{R_ST + 6}")
    a(f"v_readfirstlane_b32 s{S_T + 4}, v{V_T2 + 3}")
    for w in range(NW):
        a(f"v_sub_f32 v{R_ST + 2 * w}, v{R_ST + 2 * w}, v{V_MM}")
    for w in range(NW):
        a(f"v_mul_f32 v{R_ST + 2 * w}, s{S_C}, v{R_ST + 2 * w}")
    for w in range(NW):
        a(f"v_exp_f32 v{R_ST + 2 * w}, v{R_ST + 2 * w}")
    a("s_nop 0")
    a(f"v_mul_f32 v{V_LL}, v{R_ST}, v{R_ST + 1}")
    for w in range(1, NW):
        a(f"v_fma_f32 v{V_LL}, v{R_ST + 2 * w}, v{R_ST + 2 * w + 1}, v{V_LL}")
    a("s_waitcnt lgkmcnt(0)")
    R_F = V_O
    for i in range(16):
        a(f"v_mul_f32 v{R_F + i}, v{R_ST}, v{R_O + i}")
    for w in range(1, NW):
        for i in range(16):
            a(f"v_fma_f32 v{R_F + i}, v{R_ST + 2 * w}, v{R_O + 16 * w + i}, v{R_F + i}")
    a(f"s_lshl_b32 s{S_T}, s{S_PAIR}, 15")
    a(f"v_add_u32 v{V_T2}, s{S_T}, v{V_T2}")
    a(f"s_lshl_b32 s{S_T + 1}, s{S_WAVE}, 9")
    a(f"s_add_u32 s{S_T + 1}, s{S_T + 1}, s{S_T}")
    a(f"s_add_u32 s{S_T + 1}, s{S_T + 1}, 16384")
    a(f"v_lshl_add_u32 v{V_T2 + 2}, v0, 3, s{S_T + 1}")
    a(f"s_cmp_lg_u32 s{S_T + 4}, 0")
    a("s_cbranch_scc1 L_consumer")
    for i in range(4):
        a(f"buffer_store_dwordx4 {vr(R_F + 4 * i, 4)}, v{V_T2}, {srd(S_WS)}, 0 offen offset:{i * 1024} sc0 sc1")
    a(f"buffer_store_dwordx2 {vr(V_MM, 2)}, v{V_T2 + 2}, {srd(S_WS)}, 0 offen sc0 sc1")
    a("s_waitcnt vmcnt(0)")
    a("s_barrier")
    a(f"s_cmp_lg_u32 s{S_WAVE}, 0")
    a("s_cbranch_scc1 L_fin")
    a(f"v_mov_b32 v{V_TK}, 0x100")
    a("s_mov_b64 exec, 1")
    a(f"buffer_atomic_add v{V_TK}, v{V_WOFF}, {srd(S_WS)}, 0 offen sc1")
    a("s_mov_b64 exec, -1")
    a("s_branch L_fin")
    a.label("L_consumer")
    a(f"s_cmp_ge_u32 s{S_T + 4}, 0x100")
    a("s_cbranch_scc1 L_ready")
    a(f"s_cmp_lg_u32 s{S_WAVE}, 0")
    a("s_cbranch_scc1 L_polled")
    a("s_mov_b64 exec, 1")
    a.label("L_poll")
    a(f"buffer_load_dword v{V_TK}, v{V_WOFF}, {srd(S_WS)}, 0 offen sc0 sc1")
    a("s_waitcnt vmcnt(0)")
    a(f"v_readfirstlane_b32 s{S_T + 5}, v{V_TK}")
    a("s_nop 3")
    a(f"s_cmp_lt_u32 s{S_T + 5}, 0x100")
    a("s_cbranch_scc1 L_poll")
    a("s_mov_b64 exec, -1")
    a.label("L_polled")
    a("s_barrier")
    a.label("L_ready")
    R_P = V_V
    a(f"buffer_load_dwordx2 {vr(V_M1, 2)}, v{V_T2 + 2}, {srd(S_WS)}, 0 offen sc0 sc1")
    for i in range(4):
        a(f"buffer_load_dwordx4 {vr(R_P + 4 * i, 4)}, v{V_T2}, {srd(S_WS)}, 0 offen offset:{i * 1024} sc0 sc1")
    a(f"v_and_b32 v{V_T2 + 1}, 15, v0")
    a(f"v_lshlrev_b32 v{V_T2 + 1}, 8, v{V_T2 + 1}")
    a(f"v_lshrrev_b32 v{V_T2 + 3}, 4, v0")
    a(f"v_lshl_add_u32 v{V_T2 + 1}, v{V_T2 + 3}, 6, v{V_T2 + 1}")
    a(f"s_lshr_b32 s{S_T}, s{S_WAVE}, 1")
    a(f"s_lshl_b32 s{S_T}, s{S_T}, 12")
    a(f"s_and_b32 s{S_T + 1}, s{S_WAVE}, 1")
    a(f"s_lshl_b32 s{S_T + 1}, s{S_T + 1}, 3")
    a(f"s_add_u32 s{S_T}, s{S_T}, s{S_T + 1}")
    a(f"v_add_u32 v{V_T2 + 1}, s{S_T}, v{V_T2 + 1}")
    a("s_waitcnt vmcnt(4)")
    a(f"v_max_f32 v{V_X0}, v{V_MM}, v{V_M1}")
    a(f"v_sub_f32 v{V_AL0}, v{V_MM}, v{V_X0}")
    a(f"v_sub_f32 v{V_AL1}, v{V_M1}, v{V_X0}")
    a(f"v_mul_f32 v{V_AL0}, s{S_C}, v{V_AL0}")
    a(f"v_mul_f32 v{V_AL1}, s{S_C}, v{V_AL1}")
    a(f"v_exp_f32 v{V_AL0}, v{V_AL0}")
    a(f"v_exp_f32 v{V_AL1}, v{V_AL1}")
    a("s_nop 0")
    a(f"v_mul_f32 v{V_Z}, v{V_AL0}, v{V_LL}")
    a(f"v_fma_f32 v{V_Z}, v{V_AL1}, v{V_L1}, v{V_Z}")
    a(f"v_rcp_f32 v{V_Z}, v{V_Z}")
    a("s_nop 0")
    a(f"v_mul_f32 v{V_AL0}, v{V_AL0}, v{V_Z}")
    a(f"v_mul_f32 v{V_AL1}, v{V_AL1}, v{V_Z}")
    for i in range(16):
        a(f"v_mul_f32 v{R_F + i}, v{V_AL0}, v{R_F + i}")
    a("s_waitcnt vmcnt(0)")
    for i in range(16):
        a(f"v_fma_f32 v{R_F + i}, v{V_AL1}, v{R_P + i}, v{R_F + i}")
    for r in range(4):
        a(f"v_cvt_pk_bf16_f32 v{V_S + 2 * r}, v{R_F + r}, v{R_F + 4 + r}")
        a(f"v_cvt_pk_bf16_f32 v{V_S + 2 * r + 1}, v{R_F + 8 + r}, v{R_F + 12 + r}")
    for r in range(4):
        a(f"buffer_store_dwordx2 {vr(V_S + 2 * r, 2)}, v{V_T2 + 1}, {srd(S_OUT)}, 0 offen offset:{16 * r}")
    a.label("L_fin")
    if stamps:
        a("s_waitcnt vmcnt(0)")
        stamp(2)
        a(f"s_getreg_b32 s{S_ST + 6}, hwreg(HW_REG_XCC_ID)")
        a(f"s_getreg_b32 s{S_ST + 7}, hwreg(HW_REG_HW_ID)")
        a("s_waitcnt lgkmcnt(0)")
        for i in range(8):
            a(f"v_mov_b32 v{V_S + i}, s{S_ST + i}")
        a(f"s_lshl_b32 s{S_T}, s2, 2")
        a(f"s_add_u32 s{S_T}, s{S_T}, s{S_WAVE}")
        a(f"s_lshl_b32 s{S_T}, s{S_T}, 5")
        a(f"s_add_u32 s{S_T}, s{S_T}, {STAMP_OFF:#x}")
        a(f"v_mov_b32 v{V_T2}, s{S_T}")
        a("s_mov_b64 exec, 1")
        a(f"buffer_store_dwordx4 {vr(V_S, 4)}, v{V_T2}, {srd(S_WS)}, 0 offen")
        a(f"buffer_store_dwordx4 {vr(V_S + 4, 4)}, v{V_T2}, {srd(S_WS)}, 0 offen offset:16")
    if dbgstamps:
        a("s_waitcnt vmcnt(0)")
        a(f"s_memrealtime s[{S_ST + 4}:{S_ST + 5}]")
        a("s_waitcnt lgkmcnt(0)")
        a(f"s_not_b32 s{S_T}, s{S_ST}")
        a(f"s_not_b32 s{S_T + 1}, s{S_ST + 2}")
        a(f"s_not_b32 s{S_T + 2}, s{S_ST + 4}")
        vals = [S_T, S_ST, S_T + 1, S_ST + 2, S_T + 2, S_ST + 4]
        for i, x in enumerate(vals):
            a(f"v_mov_b32 v{V_S + i}, s{x}")
        a(f"v_mov_b32 v{V_T2}, 0")
        a("s_mov_b64 exec, 1")
        for i in range(len(vals)):
            a(f"buffer_atomic_umax v{V_S + i}, v{V_T2}, {srd(S_DBG)}, 0 offen offset:{4 * i} sc1")
    a.label("L_end")
    a("s_endpgm")

    out = HEADER
    out += f"; @launch grid=({NWG},1,1) block=({64 * NW},1,1) lds={LDS_BYTES}\n"
    out += '.amdgcn_target "amdgcn-amd-amdhsa--gfx950"\n.text\n'
    out += f".globl {KNAME}\n.p2align 8\n.type {KNAME},@function\n{KNAME}:\n"
    out += a.text()
    out += '.section .rodata,"a"\n.p2align 6\n'
    out += f".amdhsa_kernel {KNAME}\n"
    out += f"  .amdhsa_next_free_vgpr {ACC_OFF + NAGPR}\n"
    out += "  .amdhsa_next_free_sgpr 80\n"
    out += f"  .amdhsa_accum_offset {ACC_OFF}\n"
    out += "  .amdhsa_group_segment_fixed_size 0\n"
    out += "  .amdhsa_kernarg_size 48\n"
    out += "  .amdhsa_user_sgpr_count 2\n"
    out += "  .amdhsa_user_sgpr_kernarg_segment_ptr 1\n"
    out += "  .amdhsa_system_sgpr_workgroup_id_x 1\n"
    out += ".end_amdhsa_kernel\n"
    return out


if __name__ == "__main__":
    ap = argparse.ArgumentParser()
    ap.add_argument("-o", default="/dev/stdout")
    ap.add_argument("--nb", type=int, default=3)
    ap.add_argument("--ldk", default="nt")
    ap.add_argument("--ldv", default="nt")
    ap.add_argument("--mode", default="full")
    ap.add_argument("--stamps", action="store_true")
    ap.add_argument("--noxcd", action="store_true")
    ap.add_argument("--contig", action="store_true")
    ap.add_argument("--dbgstamps", action="store_true")
    args = ap.parse_args()
    txt = gen(NB=args.nb, ldk=args.ldk, ldv=args.ldv, mode=args.mode, stamps=args.stamps,
              xcdpair=not args.noxcd, contig=args.contig, dbgstamps=args.dbgstamps)
    open(args.o, "w").write(txt)
```
